```python
import torch

def _softmax(x, axis=-1):
    return torch.softmax(x, dim=axis)

def _gelu(x):
    return torch.nn.functional.gelu(x, approximate='tanh')

def _silu(x):
    return torch.nn.functional.silu(x)

def _sigmoid(x):
    return torch.sigmoid(x)

def _layernorm(x, axis=-1, eps=1e-05):
    m = x.mean(dim=axis, keepdim=True)
    v = x.var(dim=axis, keepdim=True, unbiased=False)
    return (x - m) / torch.sqrt(v + eps)

def _scatter_add(tgt, idx, src, axis=0):
    return tgt.clone().index_add_(axis, idx, src)

def _segment_sum(src, seg, n):
    out = torch.zeros((n,) + src.shape[1:], dtype=src.dtype)
    return out.index_add_(0, seg, src)

def _pad(x, pw):
    flat = tuple((v for pair in reversed(pw) for v in pair))
    return torch.nn.functional.pad(x, flat)
kernel_name = 'standalone__tree_speculative_verify_tree_attention_over_candidate_token_tree__sampling'

def setup_inputs():

    _w = lambda a: (lambda t: t.to(torch.bfloat16) if t.is_floating_point() else t)(torch.as_tensor(a))
    B, Hq, Hkv, T, C, D = (8, 32, 8, 1, 8192, 128)
    tree_mask = torch.zeros((B, T, T), dtype=float)
    for b in range(B):
        parent = torch.zeros(T, dtype=torch.int64)
        for i in range(1, T):
            parent[i] = int(torch.randint(0, i, (1,)).item())
        for i in range(T):
            j = i
            tree_mask[b, i, j] = 1.0
            while j > 0:
                j = parent[j]
                tree_mask[b, i, j] = 1.0
    return {'q': _w((lambda *s: torch.randn(*s, dtype=torch.bfloat16) * 0.8)(B, Hq, T, D)), 'k_cache': _w((lambda *s: torch.randn(*s, dtype=torch.bfloat16) * 0.8)(B, Hkv, C, D)), 'v_cache': _w((lambda *s: torch.randn(*s, dtype=torch.bfloat16) * 0.05)(B, Hkv, C, D)), 'k_tree': _w((lambda *s: torch.randn(*s, dtype=torch.bfloat16) * 0.8)(B, Hkv, T, D)), 'v_tree': _w((lambda *s: torch.randn(*s, dtype=torch.bfloat16) * 0.05)(B, Hkv, T, D)), 'tree_mask': _w(tree_mask)}

def reference(q, k_cache, v_cache, k_tree, v_tree, tree_mask):
    B, Hq, T, D = q.shape
    Hkv, C = (k_cache.shape[1], k_cache.shape[2])
    rep = Hq // Hkv
    kc = (lambda x, n, axis: torch.repeat_interleave(x, n, dim=axis))(k_cache, rep, axis=1)
    vc = (lambda x, n, axis: torch.repeat_interleave(x, n, dim=axis))(v_cache, rep, axis=1)
    kt = (lambda x, n, axis: torch.repeat_interleave(x, n, dim=axis))(k_tree, rep, axis=1)
    vt = (lambda x, n, axis: torch.repeat_interleave(x, n, dim=axis))(v_tree, rep, axis=1)
    k = torch.concatenate([kc, kt], axis=2)
    v = torch.concatenate([vc, vt], axis=2)
    scale = D ** (-0.5)
    scores = torch.einsum('bhqd,bhkd->bhqk', q, k) * scale
    ctx_mask = torch.ones((B, 1, T, C), dtype=scores.dtype)
    tm = tree_mask[:, None, :, :].clone()
    full_mask = torch.concatenate([ctx_mask, tm], axis=-1)
    scores = scores + (1.0 - full_mask) * -1000000000.0
    p = _softmax(scores, axis=-1)
    return torch.einsum('bhqk,bhkd->bhqd', p, v)
```

```python
import sys, math, struct
KN = "standalone__tree_speculative_verify_tree_attention_over_candidate_token_tree__sampling_kernel"

HEADER = """; Kernarg layout for this problem (72 bytes, ptrs only, base s[0:1]):
"""

def f2u(x):
    return struct.unpack("<I", struct.pack("<f", x))[0]

def gen(nw=8, nsplit=4, flags="nt", tmap="wg", wgmap="hi", stamps=False):
    nbuf = 3
    nwg = 64 * nsplit
    tiles_per_wg = 256 // nsplit
    tpw = tiles_per_wg // nw
    LDS_STATS = nw * 2048
    lds = LDS_STATS + 4 * nw * 8
    L = []
    A = L.append
    A(HEADER.rstrip("\n"))
    A(f"; @launch grid=({nwg},1,1) block=({nw*64},1,1) lds={lds}")
    A('.amdgcn_target "amdgcn-amd-amdhsa--gfx950"')
    A(".text")
    A(f".globl {KN}")
    A(".p2align 8")
    A(f".type {KN},@function")
    A(f"{KN}:")
    sQ, sK, sV, sKT, sVT, sMK, sOUT, sDBG, sWS = 4, 6, 8, 10, 12, 14, 16, 18, 20
    SK, SV, SX = 24, 28, 32
    sW, sBH, sSP, sT, sC, sTmp, sTmp2 = 36, 37, 38, 39, 40, 41, 42
    vLane, vK0, vK1, vV0, vV1, vT, vU = 1, 2, 3, 4, 5, 6, 7
    vQ, vO, vS, vP, vSel = 8, 24, 32, 40, 56
    vM, vMC, vL, vA = 60, 61, 62, 63
    vAO = 0
    def breg(b, i, n):
        if b < 2:
            return f"a[{64*b+i}:{64*b+i+n-1}]"
        return f"v[{64+i}:{64+i+n-1}]"
    A(f"  s_cmp_ge_u32 s2, {nwg}")
    A("  s_cbranch_scc1 L_done")
    A("  s_load_dwordx16 s[4:19], s[0:1], 0")
    A("  s_load_dwordx2 s[20:21], s[0:1], 64")
    if stamps:
        A("  s_memrealtime s[48:49]")
    A(f"  v_lshrrev_b32 v{vT}, 6, v0")
    A(f"  v_and_b32 v{vLane}, 63, v0")
    A(f"  v_readfirstlane_b32 s{sW}, v{vT}")
    if wgmap == "hi":
        A(f"  s_lshr_b32 s{sBH}, s2, {nsplit.bit_length()-1}")
        A(f"  s_and_b32 s{sSP}, s2, {nsplit-1}")
    else:
        A(f"  s_and_b32 s{sBH}, s2, 63")
        A(f"  s_lshr_b32 s{sSP}, s2, 6")
    A(f"  v_lshlrev_b32 v{vV0}, 4, v{vLane}")
    A(f"  v_add_u32 v{vV1}, 0x1000, v{vV0}")
    A(f"  v_and_b32 v{vK0}, 3, v{vLane}")
    A(f"  v_lshlrev_b32 v{vK0}, 10, v{vK0}")
    A(f"  v_bfe_u32 v{vT}, v{vLane}, 2, 2")
    A(f"  v_lshlrev_b32 v{vT}, 8, v{vT}")
    A(f"  v_and_b32 v{vU}, 48, v{vLane}")
    A(f"  v_add_u32 v{vT}, v{vT}, v{vU}")
    A(f"  v_add_u32 v{vK0}, v{vK0}, v{vT}")
    A(f"  v_add_u32 v{vK1}, 0x1000, v{vK0}")
    if tmap == "wg":
        A(f"  s_mul_i32 s{sT}, s{sSP}, {tiles_per_wg}")
        A(f"  s_add_u32 s{sT}, s{sT}, s{sW}")
        stride = nw
    elif tmap == "il":
        A(f"  s_mul_i32 s{sT}, s{sSP}, {nw}")
        A(f"  s_add_u32 s{sT}, s{sT}, s{sW}")
        stride = nw * nsplit
    elif tmap == "wave":
        A(f"  s_mul_i32 s{sT}, s{sSP}, {tiles_per_wg}")
        A(f"  s_mul_i32 s{sTmp}, s{sW}, {tpw}")
        A(f"  s_add_u32 s{sT}, s{sT}, s{sTmp}")
        stride = 1
    A(f"  s_lshl_b32 s{sT}, s{sT}, 13")
    A(f"  s_lshl_b32 s{sTmp}, s{sBH}, 21")
    A(f"  s_lshr_b32 s{sTmp2}, s{sBH}, 11")
    A(f"  s_mov_b32 s{SK+2}, 0x200000")
    A(f"  s_mov_b32 s{SK+3}, 0x20000")
    A(f"  s_mov_b32 s{SV+2}, 0x200000")
    A(f"  s_mov_b32 s{SV+3}, 0x20000")
    A(f"  s_mov_b32 s{SX+2}, 0x10000")
    A(f"  s_mov_b32 s{SX+3}, 0x20000")
    A(f"  s_or_b32 s3, s{sSP}, s{sW}")
    A("  s_waitcnt lgkmcnt(0)")
    A(f"  s_add_u32 s{SK}, s{sK}, s{sTmp}")
    A(f"  s_addc_u32 s{SK+1}, s{sK+1}, s{sTmp2}")
    A(f"  s_add_u32 s{SV}, s{sV}, s{sTmp}")
    A(f"  s_addc_u32 s{SV+1}, s{sV+1}, s{sTmp2}")
    A(f"  s_mov_b32 s{SX}, s{sQ}")
    A(f"  s_mov_b32 s{SX+1}, s{sQ+1}")
    A(f"  s_lshl_b32 s{sTmp}, s{sBH}, 10")
    for c in range(4):
        A(f"  buffer_load_dwordx4 v[{vQ+4*c}:{vQ+4*c+3}], v{vT}, s[{SX}:{SX+3}], s{sTmp} offen offset:{c*64}")
    A(f"  s_mov_b32 s{sC}, 0x{f2u(128**-0.5 * math.log2(math.e)):08x}")
    A("  s_cmp_eq_u32 s3, 0")
    A("  s_cbranch_scc1 L_tree")
    A(f"  v_mov_b32 v{vM}, 0xff800000")
    A(f"  v_mov_b32 v{vMC}, 0xff800000")
    A(f"  v_mov_b32 v{vL}, 0")
    for i in range(8):
        A(f"  v_mov_b32 v{vO+i}, 0")
    A("L_main:")
    def issueK(it):
        b = it % nbuf
        for t in range(2):
            for c in range(4):
                A(f"  buffer_load_dwordx4 {breg(b, 16*t+4*c, 4)}, v{vK0+t}, s[{SK}:{SK+3}], s{sT} offen offset:{c*64} {flags}")
    def issueV(it):
        b = it % nbuf
        for i in range(8):
            A(f"  buffer_load_dwordx4 {breg(b, 32+4*i, 4)}, v{vV0+(i>>2)}, s[{SV}:{SV+3}], s{sT} offen offset:{(i&3)*1024} {flags}")
        A(f"  s_add_u32 s{sT}, s{sT}, {stride*8192}")
    for it in range(nbuf):
        issueK(it); issueV(it)
    A(f"  v_and_b32 v{vT}, 1, v{vLane}")
    A(f"  v_cmp_eq_u32 vcc, 1, v{vT}")
    A(f"  v_mov_b32 v{vS}, 0x0c0c0100")
    A(f"  v_mov_b32 v{vS+1}, 0x01000c0c")
    A(f"  v_mov_b32 v{vS+2}, 0x0c0c0302")
    A(f"  v_mov_b32 v{vS+3}, 0x03020c0c")
    A(f"  v_cndmask_b32 v{vS}, v{vS}, v{vS+1}, vcc")
    A(f"  v_cndmask_b32 v{vS+2}, v{vS+2}, v{vS+3}, vcc")
    A(f"  v_and_b32 v{vT}, 2, v{vLane}")
    A(f"  v_cmp_eq_u32 vcc, 0, v{vT}")
    A(f"  v_mov_b32 v{vS+1}, 0x0c0c0c0c")
    A("  s_nop 0")
    A(f"  v_cndmask_b32 v{vSel+0}, v{vS+1}, v{vS}, vcc")
    A(f"  v_cndmask_b32 v{vSel+1}, v{vS}, v{vS+1}, vcc")
    A(f"  v_cndmask_b32 v{vSel+2}, v{vS+1}, v{vS+2}, vcc")
    A(f"  v_cndmask_b32 v{vSel+3}, v{vS+2}, v{vS+1}, vcc")
    pend = []
    for it in range(nbuf):
        pend += [("K", it), ("V", it)]
    def wait_for(tag):
        idx = pend.index(tag)
        younger = len(pend) - idx - 1
        A(f"  s_waitcnt vmcnt({younger*8})")
        del pend[:idx+1]
    for it in range(tpw):
        b = it % nbuf
        A(f"  ; ---- tile {it}")
        wait_for(("K", it))
        if stamps and it == 0:
            A("  s_memrealtime s[50:51]")
        for c in range(4):
            for t in range(2):
                src = "0" if c == 0 else f"v[{vS+4*t}:{vS+4*t+3}]"
                A(f"  v_mfma_f32_16x16x32_bf16 v[{vS+4*t}:{vS+4*t+3}], {breg(b,16*t+4*c,4)}, v[{vQ+4*c}:{vQ+4*c+3}], {src}")
        if it + nbuf < tpw:
            issueK(it + nbuf); pend.append(("K", it + nbuf))
        else:
            A("  s_nop 7")
        A(f"  v_max3_f32 v{vT}, v{vS}, v{vS+1}, v{vM}")
        A(f"  v_max3_f32 v{vT}, v{vS+2}, v{vS+3}, v{vT}")
        A(f"  v_max3_f32 v{vT}, v{vS+4}, v{vS+5}, v{vT}")
        A(f"  v_max3_f32 v{vT}, v{vS+6}, v{vS+7}, v{vT}")
        A(f"  v_mov_b32 v{vU}, v{vT}")
        A("  s_nop 1")
        A(f"  v_permlane32_swap_b32 v{vT}, v{vU}")
        A(f"  v_max_f32 v{vT}, v{vT}, v{vU}")
        A(f"  v_mov_b32 v{vU}, v{vT}")
        A("  s_nop 1")
        A(f"  v_permlane16_swap_b32 v{vT}, v{vU}")
        A(f"  v_max_f32 v{vM}, v{vT}, v{vU}")
        A(f"  v_mul_f32 v{vT}, s{sC}, v{vM}")
        A(f"  v_sub_f32 v{vA}, v{vMC}, v{vT}")
        A(f"  v_mov_b32 v{vMC}, v{vT}")
        A(f"  v_exp_f32 v{vA}, v{vA}")
        for i in range(8):
            A(f"  v_fma_f32 v{vS+i}, v{vS+i}, s{sC}, -v{vMC}")
        for i in range(8):
            A(f"  v_exp_f32 v{vS+i}, v{vS+i}")
        for g in range(4):
            A(f"  v_mov_b32_dpp v{vAO}, v{vA} row_newbcast:{4*g} row_mask:0x{1<<g:x} bank_mask:0xf")
        A(f"  v_add_f32 v{vT}, v{vS}, v{vS+1}")
        A(f"  v_add_f32 v{vU}, v{vS+2}, v{vS+3}")
        A(f"  v_fma_f32 v{vL}, v{vL}, v{vA}, v{vT}")
        A(f"  v_add_f32 v{vT}, v{vS+4}, v{vS+5}")
        A(f"  v_add_f32 v{vL}, v{vL}, v{vU}")
        A(f"  v_add_f32 v{vU}, v{vS+6}, v{vS+7}")
        A(f"  v_add_f32 v{vL}, v{vL}, v{vT}")
        A(f"  v_add_f32 v{vL}, v{vL}, v{vU}")
        for j in range(4):
            A(f"  v_cvt_pk_bf16_f32 v{vS+2*j}, v{vS+2*j}, v{vS+2*j+1}")
        for i in range(8):
            pk = vS + 2 * (i >> 1)
            for dw in range(2):
                A(f"  v_perm_b32 v{vP+2*i+dw}, v{pk}, v{pk}, v{vSel+2*(i&1)+dw}")
        for i in range(8):
            A(f"  v_mul_f32 v{vO+i}, v{vO+i}, v{vAO}")
        wait_for(("V", it))
        A("  s_nop 0")
        for i in range(8):
            for hf in range(2):
                A(f"  v_mfma_f32_16x16x16_bf16 v[{vO+4*hf}:{vO+4*hf+3}], v[{vP+2*i}:{vP+2*i+1}], {breg(b,32+4*i+2*hf,2)}, v[{vO+4*hf}:{vO+4*hf+3}]")
        if it + nbuf < tpw:
            issueV(it + nbuf); pend.append(("V", it + nbuf))
    if stamps:
        A("  s_memrealtime s[52:53]")
    A(f"  v_mov_b32 v{vU}, v{vL}")
    A("  s_nop 1")
    A(f"  v_permlane32_swap_b32 v{vL}, v{vU}")
    A(f"  v_add_f32 v{vL}, v{vL}, v{vU}")
    A(f"  v_mov_b32 v{vU}, v{vL}")
    A("  s_nop 1")
    A(f"  v_permlane16_swap_b32 v{vL}, v{vU}")
    A(f"  v_add_f32 v{vA}, v{vL}, v{vU}")
    A(f"  v_mov_b32 v{vL}, v{vMC}")
    A(f"  s_lshl_b32 s{sTmp}, s{sW}, 11")
    A(f"  v_lshlrev_b32 v{vT}, 5, v{vLane}")
    A(f"  v_add_u32 v{vU}, s{sTmp}, v{vT}")
    A(f"  s_lshl_b32 s{sTmp}, s{sW}, 3")
    A(f"  s_add_u32 s{sTmp}, s{sTmp}, {LDS_STATS}")
    A(f"  v_bfe_u32 v{vK0}, v{vLane}, 2, 2")
    A(f"  v_mul_u32_u24 v{vK0}, {nw*8}, v{vK0}")
    A(f"  v_add_u32 v{vK0}, s{sTmp}, v{vK0}")
    A(f"  ds_write_b128 v{vU}, v[{vO}:{vO+3}]")
    A(f"  ds_write_b128 v{vU}, v[{vO+4}:{vO+7}] offset:16")
    A("  s_mov_b64 exec, 0x1111")
    A(f"  ds_write_b64 v{vK0}, v[{vL}:{vL+1}]")
    A("  s_mov_b64 exec, -1")
    A("  s_waitcnt lgkmcnt(0)")
    A("  s_barrier")
    A(f"  s_cmp_lg_u32 s{sW}, 0")
    A("  s_cbranch_scc1 L_done")
    vST = 32
    vOW = 64
    A(f"  v_lshrrev_b32 v{vK0}, 4, v{vLane}")
    A(f"  v_mul_u32_u24 v{vK0}, {nw*8}, v{vK0}")
    for j in range(nw // 2):
        A(f"  ds_read_b128 v[{vST+4*j}:{vST+4*j+3}], v{vK0} offset:{LDS_STATS+16*j}")
    for w in range(nw):
        A(f"  ds_read_b128 v[{vOW+8*w}:{vOW+8*w+3}], v{vT} offset:{w*2048}")
        A(f"  ds_read_b128 v[{vOW+8*w+4}:{vOW+8*w+7}], v{vT} offset:{w*2048+16}")
    A(f"  s_mov_b32 s{SX}, s{sWS}")
    A(f"  s_mov_b32 s{SX+1}, s{sWS+1}")
    A(f"  s_mov_b32 s{SX+2}, 0x{nwg*4096:x}")
    A(f"  s_mov_b32 s{SK}, s{sDBG}")
    A(f"  s_mov_b32 s{SK+1}, s{sDBG+1}")
    A(f"  s_mov_b32 s{SK+2}, 256")
    A(f"  s_mov_b32 s{SV}, s{sOUT}")
    A(f"  s_mov_b32 s{SV+1}, s{sOUT+1}")
    A(f"  s_mov_b32 s{SV+2}, 0x10000")
    A(f"  s_lshl_b32 s{sTmp}, s{sBH}, {12 + nsplit.bit_length()-1}")
    A(f"  s_lshl_b32 s{sTmp2}, s{sSP}, 12")
    A(f"  s_add_u32 s{sTmp2}, s{sTmp2}, s{sTmp}")
    A(f"  v_lshlrev_b32 v{vU}, 3, v{vLane}")
    def combine(n, waitfirst, waitall):
        A(waitfirst)
        ms = [vST + 2*i for i in range(n)]
        if n == 2:
            A(f"  v_max_f32 v{vL}, v{ms[0]}, v{ms[1]}")
        else:
            A(f"  v_max3_f32 v{vL}, v{ms[0]}, v{ms[1]}, v{ms[2]}")
            k = 3
            while k < n:
                if k + 1 < n:
                    A(f"  v_max3_f32 v{vL}, v{ms[k]}, v{ms[k+1]}, v{vL}"); k += 2
                else:
                    A(f"  v_max_f32 v{vL}, v{ms[k]}, v{vL}"); k += 1
        for m in ms:
            A(f"  v_sub_f32 v{m}, v{m}, v{vL}")
        for m in ms:
            A(f"  v_exp_f32 v{m}, v{m}")
        A("  s_nop 0")
        A(f"  v_mul_f32 v{vA}, v{ms[0]}, v{ms[0]+1}")
        for m in ms[1:]:
            A(f"  v_fmac_f32 v{vA}, v{m}, v{m+1}")
        A(waitall)
        for i, m in enumerate(ms):
            for j in range(4):
                src = f"v[{vOW+8*i+2*j}:{vOW+8*i+2*j+1}]"
                dst = f"v[{vO+2*j}:{vO+2*j+1}]"
                if i == 0:
                    A(f"  v_pk_mul_f32 {dst}, {src}, v[{m}:{m+1}] op_sel_hi:[1,0]")
                else:
                    A(f"  v_pk_fma_f32 {dst}, {src}, v[{m}:{m+1}], {dst} op_sel_hi:[1,0,1]")
    combine(nw, f"  s_waitcnt lgkmcnt({min(15, 2*nw)})" if 2*nw <= 15 else "  s_waitcnt lgkmcnt(15)", "  s_waitcnt lgkmcnt(0)")
    A(f"  buffer_store_dwordx4 v[{vO}:{vO+3}], v{vT}, s[{SX}:{SX+3}], s{sTmp2} offen sc1")
    A(f"  buffer_store_dwordx4 v[{vO+4}:{vO+7}], v{vT}, s[{SX}:{SX+3}], s{sTmp2} offen offset:16 sc1")
    A(f"  buffer_store_dwordx2 v[{vL}:{vL+1}], v{vU}, s[{SX}:{SX+3}], s{sTmp2} offen offset:2048 sc1")
    A(f"  s_lshl_b32 s3, s{sBH}, 2")
    A(f"  v_mov_b32 v{vK1}, 1")
    A(f"  v_mov_b32 v{vK0}, 0")
    A("  s_waitcnt vmcnt(0)")
    A("  s_mov_b64 exec, 1")
    A(f"  buffer_atomic_add v{vK1}, v{vK0}, s[{SK}:{SK+3}], s3 offen sc0")
    A("  s_waitcnt vmcnt(0)")
    A("  s_mov_b64 exec, -1")
    A(f"  v_readfirstlane_b32 s3, v{vK1}")
    A(f"  s_cmp_lg_u32 s3, {nsplit-1}")
    A("  s_cbranch_scc1 L_fin")
    for i in range(nsplit):
        A(f"  buffer_load_dwordx2 v[{vST+2*i}:{vST+2*i+1}], v{vU}, s[{SX}:{SX+3}], s{sTmp} offen offset:2048 sc1")
        A(f"  s_add_u32 s{sTmp}, s{sTmp}, 4096")
    A(f"  s_sub_u32 s{sTmp}, s{sTmp}, {4096*nsplit}")
    for i in range(nsplit):
        A(f"  buffer_load_dwordx4 v[{vOW+8*i}:{vOW+8*i+3}], v{vT}, s[{SX}:{SX+3}], s{sTmp} offen sc1")
        A(f"  buffer_load_dwordx4 v[{vOW+8*i+4}:{vOW+8*i+7}], v{vT}, s[{SX}:{SX+3}], s{sTmp} offen offset:16 sc1")
        A(f"  s_add_u32 s{sTmp}, s{sTmp}, 4096")
    combine(nsplit, f"  s_waitcnt vmcnt({2*nsplit})", "  s_waitcnt vmcnt(0)")
    A(f"  v_rcp_f32 v{vA}, v{vA}")
    A(f"  s_lshl_b32 s3, s{sBH}, 10")
    for j in range(8):
        A(f"  v_mul_f32 v{vO+j}, v{vO+j}, v{vA}")
    for j in range(4):
        A(f"  v_cvt_pk_bf16_f32 v{vO+j}, v{vO+2*j}, v{vO+2*j+1}")
    A(f"  buffer_store_dwordx4 v[{vO}:{vO+3}], v{vV0}, s[{SV}:{SV+3}], s3 offen")
    A("L_fin:")
    if stamps:
        A("  s_waitcnt vmcnt(0)")
        A("  s_memrealtime s[54:55]")
        A("  s_waitcnt lgkmcnt(0)")
        A(f"  s_add_u32 s{SX}, s{sWS}, 0x10000000")
        A(f"  s_addc_u32 s{SX+1}, s{sWS+1}, 0")
        A(f"  s_mov_b32 s{SX+2}, 0x100000")
        for i in range(8):
            A(f"  v_mov_b32 v{8+i}, s{48+i}")
        A("  s_lshl_b32 s3, s2, 5")
        A("  v_mov_b32 v1, 0")
        A("  s_mov_b64 exec, 1")
        A(f"  buffer_store_dwordx4 v[8:11], v1, s[{SX}:{SX+3}], s3 offen")
        A(f"  buffer_store_dwordx4 v[12:15], v1, s[{SX}:{SX+3}], s3 offen offset:16")
    A("L_done:")
    A("  s_endpgm")
    A("L_tree:")
    A(f"  s_mov_b32 s{SX}, s{sKT}")
    A(f"  s_mov_b32 s{SX+1}, s{sKT+1}")
    A(f"  s_mov_b32 s{SX+2}, 0x4000")
    A(f"  s_lshl_b32 s{sTmp}, s{sBH}, 8")
    for c in range(4):
        A(f"  buffer_load_dwordx4 a[{4*c}:{4*c+3}], v{vU}, s[{SX}:{SX+3}], s{sTmp} offen offset:{c*64}")
    A(f"  s_mov_b32 s44, s{sVT}")
    A(f"  s_mov_b32 s45, s{sVT+1}")
    A(f"  s_mov_b32 s46, 0x4000")
    A(f"  s_mov_b32 s47, 0x20000")
    A(f"  v_and_b32 v{vT}, 0xf0, v{vV0}")
    A(f"  buffer_load_dwordx4 v[{vP}:{vP+3}], v{vT}, s[44:47], s{sTmp} offen")
    A(f"  s_mov_b32 s56, s{sMK}")
    A(f"  s_mov_b32 s57, s{sMK+1}")
    A(f"  s_mov_b32 s58, 16")
    A(f"  s_mov_b32 s59, 0x20000")
    A(f"  s_lshr_b32 s{sTmp}, s{sBH}, 3")
    A(f"  s_lshl_b32 s{sTmp}, s{sTmp}, 1")
    A(f"  v_mov_b32 v{vT}, 0")
    A(f"  buffer_load_ushort v{vA}, v{vT}, s[56:59], s{sTmp} offen")
    A(f"  v_mov_b32 v{vL}, 0x3e800000")
    A(f"  s_mov_b32 s{sTmp2}, 0x{f2u(-1e9 * 128**0.5):08x}")
    A("  s_waitcnt vmcnt(0)")
    for c in range(4):
        src = "0" if c == 0 else f"v[{vS}:{vS+3}]"
        A(f"  v_mfma_f32_16x16x32_bf16 v[{vS}:{vS+3}], a[{4*c}:{4*c+3}], v[{vQ+4*c}:{vQ+4*c+3}], {src}")
    A(f"  v_lshlrev_b32 v{vA}, 16, v{vA}")
    A(f"  v_sub_f32 v{vA}, 1.0, v{vA}")
    for j in range(4):
        A(f"  v_lshlrev_b32 v{vO+2*j}, 16, v{vP+j}")
        A(f"  v_and_b32 v{vO+2*j+1}, 0xffff0000, v{vP+j}")
    A(f"  v_fma_f32 v{vM}, v{vA}, s{sTmp2}, v{vS}")
    A(f"  v_mul_f32 v{vMC}, s{sC}, v{vM}")
    A("  s_branch L_main")
    A('.section .rodata,"a"')
    A(".p2align 6")
    A(f".amdhsa_kernel {KN}")
    A("  .amdhsa_next_free_vgpr 256")
    A("  .amdhsa_next_free_sgpr 64")
    A("  .amdhsa_accum_offset 128")
    A("  .amdhsa_group_segment_fixed_size 0")
    A("  .amdhsa_kernarg_size 72")
    A("  .amdhsa_user_sgpr_count 2")
    A("  .amdhsa_user_sgpr_kernarg_segment_ptr 1")
    A("  .amdhsa_system_sgpr_workgroup_id_x 1")
    A(".end_amdhsa_kernel")
    return "\n".join(L) + "\n"

if __name__ == "__main__":
    open("v1.s", "w").write(gen())
    open("v1_st.s", "w").write(gen(stamps=True))
    open("v1_nont.s", "w").write(gen(flags=""))
```
